```python
import torch

def _softmax(x, axis=-1):
    return torch.softmax(x, dim=axis)
def _gelu(x):
    return torch.nn.functional.gelu(x, approximate="tanh")
def _silu(x):
    return torch.nn.functional.silu(x)
def _sigmoid(x):
    return torch.sigmoid(x)
def _layernorm(x, axis=-1, eps=1e-5):
    m = x.mean(dim=axis, keepdim=True)
    v = x.var(dim=axis, keepdim=True, unbiased=False)
    return (x - m) / torch.sqrt(v + eps)
def _scatter_add(tgt, idx, src, axis=0):
    return tgt.clone().index_add_(axis, idx, src)
def _segment_sum(src, seg, n):
    out = torch.zeros((n,) + src.shape[1:], dtype=src.dtype)
    return out.index_add_(0, seg, src)
def _pad(x, pw):
    flat = tuple(v for pair in reversed(pw) for v in pair)
    return torch.nn.functional.pad(x, flat)

kernel_name = 'parallel_sum__sliding_block_cached__glu_gated_reglu__decode'

def setup_inputs():

    _w = (lambda a: (lambda t: t.to(torch.bfloat16) if t.is_floating_point() else t)(torch.as_tensor(a)))
    def _A_setup():
        B, Sq, D = 1, 1, 576
        Hq, Hkv, Sk, Dh = 32, 16, 32768, 128
        assert Hq % Hkv == 0, (Hq, Hkv)
        return {
            "x": _w((lambda *s: torch.randn(*s, dtype=torch.bfloat16) * 0.05)(B, Sq, D)),
            "k_cache": _w((lambda *s: torch.randn(*s, dtype=torch.bfloat16) * 1.6)(B, Hkv, Sk, Dh)),
            "v_cache": _w((lambda *s: torch.randn(*s, dtype=torch.bfloat16) * 0.8)(B, Hkv, Sk, Dh)),
            "wq": _w((lambda *s: torch.randn(*s, dtype=torch.bfloat16) * 1.6)(D, Hq * Dh) * (D ** -0.5)),
            "wo": _w((lambda *s: torch.randn(*s, dtype=torch.bfloat16) * 0.8)(Hq * Dh, D) * ((Hq * Dh) ** -0.5)),
        }
    _A_in = _A_setup()

    def _B_setup():
        B, S, D, F = 1, 1, 576, 4608
        return {
            "x": _w((lambda *s: torch.randn(*s, dtype=torch.bfloat16) * 0.05)(B, S, D)),
            "W_gate": _w((lambda *s: torch.randn(*s, dtype=torch.bfloat16) * 0.4)(D, F) * (2.0 / D) ** 0.5),
            "W_up": _w((lambda *s: torch.randn(*s, dtype=torch.bfloat16) * 0.4)(D, F) * (2.0 / D) ** 0.5),
            "W_down": _w((lambda *s: torch.randn(*s, dtype=torch.bfloat16) * 0.4)(F, D) * (1.0 / F) ** 0.5),
        }
    _B_in = _B_setup()

    return {
        "A_x": _A_in["x"],
        "A_k_cache": _A_in["k_cache"],
        "A_v_cache": _A_in["v_cache"],
        "A_wq": _A_in["wq"],
        "A_wo": _A_in["wo"],
        "B_x": _B_in["x"],
        "B_W_gate": _B_in["W_gate"],
        "B_W_up": _B_in["W_up"],
        "B_W_down": _B_in["W_down"],
    }

def reference(A_x, A_k_cache, A_v_cache, A_wq, A_wo, B_x, B_W_gate, B_W_up, B_W_down):
    def _A_ref(x, k_cache, v_cache, wq, wo):
        B, Sq, D = x.shape
        Hq, Dh = 32, 128
        Hkv, Sk = k_cache.shape[1], k_cache.shape[2]
        W = min(4096, max(256, Sk // 4))
        rep = Hq // Hkv
        q = (lambda x, *d: x.permute(*d))((x @ wq).reshape(B, Sq, Hq, Dh), 0, 2, 1, 3)
        k = (lambda x, n, axis: torch.repeat_interleave(x, n, dim=axis))(k_cache[:, :, Sk - W:, :], rep, axis=1)
        v = (lambda x, n, axis: torch.repeat_interleave(x, n, dim=axis))(v_cache[:, :, Sk - W:, :], rep, axis=1)
        scores = torch.einsum("bhqd,bhkd->bhqk", q, k) * (Dh ** -0.5)
        p = _softmax(scores, axis=-1)
        o = torch.einsum("bhqk,bhkd->bhqd", p, v)
        return (lambda x, *d: x.permute(*d))(o, 0, 2, 1, 3).reshape(B, Sq, Hq * Dh) @ wo

    def _B_ref(x, W_gate, W_up, W_down):
        gate = torch.einsum("bsd,df->bsf", x, W_gate)
        up = torch.einsum("bsd,df->bsf", x, W_up)
        gate = gate * (lambda x, dt: x.to(dt))(gate > 0, gate.dtype)
        h = gate * up
        return torch.einsum("bsf,fd->bsd", h, W_down)

    x = A_x
    xn = _layernorm(x, axis=-1)
    return x + _A_ref(xn, A_k_cache, A_v_cache, A_wq, A_wo) + _B_ref(xn, B_W_gate, B_W_up, B_W_down)
```

```python
import sys
NAME="parallel_sum__sliding_block_cached__glu_gated_reglu__decode"
out=[]
import re
def A(s=""):
    m=re.search(r'buffer_.*offset:(\d+)',s)
    if m: assert int(m.group(1))<4096, s
    out.append(s)

HDR = open('cdna_kernels/%s.s.ref'%NAME).read().split('\n')
hdr=[l for l in HDR if l.startswith(';') and '@launch' not in l]

WS_Q=0
WS_OP=65536
WS_ST=WS_OP+32*16*128*4
WS_ACC=WS_ST+4096
NREP=16
WS_SIZE=WS_ACC+NREP*2304

def dpp_sum64(v, t=None):
    for c in ["row_shr:1","row_shr:2","row_shr:4","row_shr:8"]:
        A("  s_nop 1")
        A(f"  v_add_f32_dpp v{v}, v{v}, v{v} {c} row_mask:0xf bank_mask:0xf bound_ctrl:0")
    A("  s_nop 1")
    A(f"  v_add_f32_dpp v{v}, v{v}, v{v} row_bcast:15 row_mask:0xa bank_mask:0xf")
    A("  s_nop 1")
    A(f"  v_add_f32_dpp v{v}, v{v}, v{v} row_bcast:31 row_mask:0xc bank_mask:0xf")
    A("  s_nop 1")

def rbf16(v, t=None):
    A(f"  v_cvt_pk_bf16_f32 v{v}, v{v}, v{v}")
    A(f"  v_lshlrev_b32 v{v}, 16, v{v}")

def kernel_begin(name):
    A(".text"); A(f".globl {name}"); A(".p2align 8"); A(f".type {name},@function"); A(f"{name}:")
def kernel_end(name, vg, sg):
    A("  s_endpgm")
    A('.section .rodata,"a"'); A(".p2align 6"); A(f".amdhsa_kernel {name}")
    A(f"  .amdhsa_next_free_vgpr {vg}"); A(f"  .amdhsa_next_free_sgpr {sg}")
    A(f"  .amdhsa_accum_offset {(vg+3)//4*4}")
    A("  .amdhsa_group_segment_fixed_size 0"); A("  .amdhsa_kernarg_size 96")
    A("  .amdhsa_user_sgpr_count 2"); A("  .amdhsa_user_sgpr_kernarg_segment_ptr 1")
    A("  .amdhsa_system_sgpr_workgroup_id_x 1"); A(".end_amdhsa_kernel")

def k1():
    n="k1proj_kernel"
    kernel_begin(n)
    A("  s_cmp_ge_u32 s2, 208")
    A("  s_cbranch_scc1 K1_END")
    A("  s_load_dwordx2 s[4:5], s[0:1], 0")
    A("  s_load_dwordx2 s[6:7], s[0:1], 24")
    A("  s_load_dwordx4 s[8:11], s[0:1], 48")
    A("  s_load_dwordx2 s[12:13], s[0:1], 88")
    A("  v_and_b32 v1, 63, v0")
    A("  v_lshrrev_b32 v2, 6, v0")
    A("  v_mov_b32 v9, 0x240000")
    A("  s_waitcnt lgkmcnt(0)")
    A("  s_mov_b32 s16, s4"); A("  s_mov_b32 s17, s5"); A("  s_mov_b32 s18, 1152"); A("  s_mov_b32 s19, 0x00020000")
    A("  v_lshlrev_b32 v3, 1, v1")
    for j in range(9):
        A(f"  buffer_load_ushort v{10+j}, v3, s[16:19], 0 offen offset:{j*128}")
    A("  s_cmp_lt_u32 s2, 64")
    A("  s_cselect_b32 s20, s6, s8"); A("  s_cselect_b32 s21, s7, s9")
    A("  s_mov_b32 s24, 9216"); A("  s_cselect_b32 s24, 8192, s24")
    A("  s_cselect_b32 s25, 0, 64")
    A("  s_cmp_lt_u32 s2, 136")
    A("  s_cselect_b32 s20, s20, s10"); A("  s_cselect_b32 s21, s21, s11")
    A("  s_cselect_b32 s25, s25, 136")
    A("  s_sub_u32 s25, s2, s25")
    A("  s_lshl_b32 s25, s25, 7")
    A("  s_mul_i32 s22, s24, 576")
    A("  s_mov_b32 s23, 0x00020000")
    A("  v_lshrrev_b32 v4, 3, v1")
    A("  v_lshl_add_u32 v4, v2, 3, v4")
    A("  v_mov_b32 v8, v4")
    A("  v_mul_lo_u32 v4, v4, s24")
    A("  v_and_b32 v5, 7, v1")
    A("  v_lshlrev_b32 v5, 4, v5")
    A("  v_add3_u32 v4, v4, v5, s25")
    A("  s_lshl_b32 s26, s24, 5")
    A("  s_mov_b32 s27, 0")
    for i in range(18):
        A(f"  buffer_load_dwordx4 v[{40+4*i}:{43+4*i}], v4, s[20:23], s27 offen nt")
        if i<17: A("  s_add_u32 s27, s27, s26")
    A("  s_waitcnt vmcnt(18)")
    for j in range(9): A(f"  v_lshlrev_b32 v{10+j}, 16, v{10+j}")
    A("  v_add_f32 v20, v10, v11")
    for j in range(2,9): A(f"  v_add_f32 v20, v20, v{10+j}")
    dpp_sum64(20)
    A("  v_readlane_b32 s28, v20, 63")
    A("  s_nop 3")
    A("  v_mov_b32 v21, s28")
    A(f"  v_mul_f32 v21, 0x{f2u(1.0/576):08x}, v21")
    A("  v_mov_b32 v22, v21")
    rbf16(22)
    A("  v_sub_f32 v23, v10, v21"); A("  v_mul_f32 v20, v23, v23")
    for j in range(1,9):
        A(f"  v_sub_f32 v23, v{10+j}, v21"); A("  v_fmac_f32 v20, v23, v23")
    dpp_sum64(20)
    A("  v_readlane_b32 s28, v20, 63")
    A("  s_nop 3")
    A("  v_mov_b32 v21, s28")
    A(f"  v_mul_f32 v21, 0x{f2u(1.0/576):08x}, v21")
    rbf16(21)
    A(f"  v_add_f32 v21, 0x{f2u(1e-5):08x}, v21")
    rbf16(21)
    A("  v_sqrt_f32 v21, v21"); A("  s_nop 0")
    rbf16(21)
    A("  v_rcp_f32 v24, v21"); A("  s_nop 0")
    A("  v_mul_u32_u24 v6, 576, v2"); A("  v_add_u32 v6, v6, v1"); A("  v_lshlrev_b32 v6, 2, v6")
    for j in range(9):
        A(f"  v_sub_f32 v23, v{10+j}, v22"); rbf16(23)
        A("  v_mul_f32 v25, v23, v24")
        A("  v_fma_f32 v26, -v25, v21, v23")
        A("  v_fmac_f32 v25, v26, v24")
        rbf16(25)
        A(f"  ds_write_b32 v6, v25 offset:{j*256}")
    A("  v_mul_u32_u24 v7, 576, v2"); A("  v_add_u32 v7, v7, v8"); A("  v_lshlrev_b32 v7, 2, v7")
    A("  s_waitcnt lgkmcnt(0)")
    for i in range(18): A(f"  ds_read_b32 v{10+i}, v7 offset:{i*128}")
    for e in range(8): A(f"  v_mov_b32 v{30+e}, 0")
    A("  s_waitcnt lgkmcnt(0)")
    for i in range(18):
        A(f"  s_waitcnt vmcnt({17-i})")
        for k in range(4):
            r=40+4*i+k
            A(f"  v_lshlrev_b32 v28, 16, v{r}"); A(f"  v_and_b32 v29, 0xffff0000, v{r}")
            A(f"  v_fmac_f32 v{30+2*k}, v28, v{10+i}"); A(f"  v_fmac_f32 v{31+2*k}, v29, v{10+i}")
    A("  v_lshlrev_b32 v6, 5, v0")
    A("  ds_write_b128 v6, v[30:33] offset:9216"); A("  ds_write_b128 v6, v[34:37] offset:9232")
    A("  s_waitcnt lgkmcnt(0)"); A("  s_barrier")
    A("  v_cmp_gt_u32 vcc, 64, v0")
    A("  s_and_saveexec_b64 s[30:31], vcc"); A("  s_cbranch_execz K1_END")
    A("  v_lshlrev_b32 v6, 2, v0")
    for p in range(32): A(f"  ds_read_b32 v{40+p}, v6 offset:{9216+p*256}")
    A("  s_waitcnt lgkmcnt(0)")
    for p in range(1,32): A(f"  v_add_f32 v40, v40, v{40+p}")
    rbf16(40)
    A("  s_mov_b32 s16, s12"); A("  s_mov_b32 s17, s13"); A(f"  s_mov_b32 s18, {WS_SIZE}"); A("  s_mov_b32 s19, 0x00020000")
    A("  s_lshl_b32 s27, s2, 8")
    A("  buffer_store_dword v40, v6, s[16:19], s27 offen")
    A("  s_cmp_ge_u32 s2, 144"); A("  s_cbranch_scc1 K1_END")
    A("  v_mov_b32 v41, 0")
    A(f"  s_add_u32 s27, s27, {WS_ACC}")
    A("  buffer_store_dword v41, v6, s[16:19], s27 offen")
    A("K1_END:")
    kernel_end(n,112,40)

import struct
def f2u(f): return struct.unpack('<I',struct.pack('<f',f))[0]

def k2():
    n="k2attn_kernel"
    kernel_begin(n)
    KB=64; VB=128; Q0=32; Q1=40
    A("  s_cmp_ge_u32 s2, 256"); A("  s_cbranch_scc1 K2_END")
    A("  s_load_dwordx4 s[4:7], s[0:1], 8")
    A("  s_load_dwordx2 s[12:13], s[0:1], 88")
    A("  v_and_b32 v1, 63, v0"); A("  v_lshrrev_b32 v2, 6, v0")
    A("  s_lshr_b32 s20, s2, 4")
    A("  s_and_b32 s21, s2, 15")
    A("  s_waitcnt lgkmcnt(0)")
    A("  s_mov_b32 s16, s12"); A("  s_mov_b32 s17, s13"); A(f"  s_mov_b32 s18, {WS_SIZE}"); A("  s_mov_b32 s19, 0x00020000")
    A("  s_mul_i32 s22, s20, 0x800000"); A("  s_lshl_b32 s23, s21, 16"); A("  s_add_u32 s22, s22, s23"); A("  s_add_u32 s22, s22, 0x700000")
    A("  s_add_u32 s8, s4, s22"); A("  s_addc_u32 s9, s5, 0"); A("  s_mov_b32 s10, 65536"); A("  s_mov_b32 s11, 0x00020000")
    A("  s_add_u32 s24, s6, s22"); A("  s_addc_u32 s25, s7, 0"); A("  s_mov_b32 s26, 65536"); A("  s_mov_b32 s27, 0x00020000")
    A("  v_lshlrev_b32 v3, 4, v1"); A("  v_lshl_add_u32 v3, v2, 14, v3")
    A("  s_mov_b32 s28, 4096"); A("  s_mov_b32 s29, 8192"); A("  s_mov_b32 s30, 12288")
    so=["0","s28","s29","s30"]
    for j in range(16):
        A(f"  buffer_load_dwordx4 v[{KB+4*j}:{KB+4*j+3}], v3, s[8:11], {so[j//4]} offen offset:{(j%4)*1024} nt")
    A("  v_and_b32 v4, 15, v1"); A("  v_lshlrev_b32 v4, 5, v4")
    A("  s_lshl_b32 s31, s20, 10")
    A(f"  buffer_load_dwordx4 v[{Q0}:{Q0+3}], v4, s[16:19], s31 offen")
    A(f"  buffer_load_dwordx4 v[{Q0+4}:{Q0+7}], v4, s[16:19], s31 offen offset:16")
    A(f"  buffer_load_dwordx4 v[{Q1}:{Q1+3}], v4, s[16:19], s31 offen offset:512")
    A(f"  buffer_load_dwordx4 v[{Q1+4}:{Q1+7}], v4, s[16:19], s31 offen offset:528")
    for j in range(16):
        A(f"  buffer_load_dwordx4 v[{VB+4*j}:{VB+4*j+3}], v3, s[24:27], {so[j//4]} offen offset:{(j%4)*1024} nt")
    S0=192; S1=208
    A("  s_waitcnt vmcnt(16)")
    for j in range(16):
        for k in range(4):
            r=KB+4*j+k
            A(f"  v_lshlrev_b32 v5, 16, v{r}"); A(f"  v_and_b32 v6, 0xffff0000, v{r}")
            if k==0:
                A(f"  v_mul_f32 v{S0+j}, v5, v{Q0}"); A(f"  v_mul_f32 v{S1+j}, v5, v{Q1}")
            else:
                A(f"  v_fmac_f32 v{S0+j}, v5, v{Q0+2*k}"); A(f"  v_fmac_f32 v{S1+j}, v5, v{Q1+2*k}")
            A(f"  v_fmac_f32 v{S0+j}, v6, v{Q0+2*k+1}"); A(f"  v_fmac_f32 v{S1+j}, v6, v{Q1+2*k+1}")
    for c in [8,4,2,1]:
        for j in range(16):
            for S in (S0,S1):
                A(f"  v_add_f32_dpp v{S+j}, v{S+j}, v{S+j} row_ror:{c} row_mask:0xf bank_mask:0xf")
    sc=128**-0.5
    A(f"  s_mov_b32 s33, 0x{f2u(sc):08x}"); A(f"  s_mov_b32 s34, 0x{f2u(1.4426950408889634):08x}")
    for j in range(16):
        for S in (S0,S1):
            rbf16(S+j)
            A(f"  v_mul_f32 v{S+j}, s33, v{S+j}")
            rbf16(S+j)
            A(f"  v_mul_f32 v{S+j}, s34, v{S+j}")
    for (S,M) in ((S0,8),(S1,9)):
        A(f"  v_max_f32 v{M}, v{S}, v{S+1}")
        for j in range(2,16): A(f"  v_max_f32 v{M}, v{M}, v{S+j}")
        A("  s_nop 0")
        for q in range(4): A(f"  v_readlane_b32 s{36+q}, v{M}, {16*q}")
        A("  s_nop 3")
        A(f"  v_mov_b32 v{M}, s36")
        for q in range(1,4): A(f"  v_max_f32 v{M}, s{36+q}, v{M}")
    for (S,M,L) in ((S0,8,10),(S1,9,11)):
        for j in range(16):
            A(f"  v_sub_f32 v{S+j}, v{S+j}, v{M}"); A(f"  v_exp_f32 v{S+j}, v{S+j}")
        A("  s_nop 0")
        A(f"  v_add_f32 v{L}, v{S}, v{S+1}")
        for j in range(2,16): A(f"  v_add_f32 v{L}, v{L}, v{S+j}")
    for j in range(16):
        A(f"  s_waitcnt vmcnt({15-j})")
        for k in range(4):
            r=VB+4*j+k
            A(f"  v_lshlrev_b32 v5, 16, v{r}"); A(f"  v_and_b32 v6, 0xffff0000, v{r}")
            op = "v_mul_f32" if j==0 else "v_fmac_f32"
            A(f"  {op} v{16+2*k}, v5, v{S0+j}"); A(f"  {op} v{17+2*k}, v6, v{S0+j}")
            A(f"  {op} v{24+2*k}, v5, v{S1+j}"); A(f"  {op} v{25+2*k}, v6, v{S1+j}")
    A("  v_lshrrev_b32 v5, 4, v1"); A("  v_lshl_add_u32 v5, v2, 2, v5")
    A("  v_lshlrev_b32 v6, 10, v5"); A("  v_and_b32 v7, 15, v1"); A("  v_lshl_add_u32 v6, v7, 5, v6")
    A("  ds_write_b128 v6, v[16:19]"); A("  ds_write_b128 v6, v[20:23] offset:16")
    A("  ds_write_b128 v6, v[24:27] offset:512"); A("  ds_write_b128 v6, v[28:31] offset:528")
    A("  v_lshlrev_b32 v6, 4, v5")
    A("  ds_write_b128 v6, v[8:11] offset:16384")
    A("  s_waitcnt lgkmcnt(0)"); A("  s_barrier")
    A("  v_lshrrev_b32 v1, 7, v0"); A("  v_and_b32 v2, 127, v0")
    A("  v_lshlrev_b32 v3, 2, v1")
    for p in range(16):
        A(f"  ds_read_b32 v{32+p}, v3 offset:{16384+p*16}")
        A(f"  ds_read_b32 v{48+p}, v3 offset:{16384+p*16+8}")
    A("  v_lshlrev_b32 v4, 2, v2"); A("  v_lshl_add_u32 v4, v1, 9, v4")
    for p in range(16): A(f"  ds_read_b32 v{64+p}, v4 offset:{p*1024}")
    A("  s_waitcnt lgkmcnt(0)")
    A("  v_max_f32 v5, v32, v33")
    for p in range(2,16): A(f"  v_max_f32 v5, v5, v{32+p}")
    for p in range(16):
        A(f"  v_sub_f32 v{32+p}, v{32+p}, v5"); A(f"  v_exp_f32 v{32+p}, v{32+p}")
    A("  s_nop 0")
    A("  v_mul_f32 v6, v32, v48"); A("  v_mul_f32 v7, v32, v64")
    for p in range(1,16):
        A(f"  v_fmac_f32 v6, v{32+p}, v{48+p}"); A(f"  v_fmac_f32 v7, v{32+p}, v{64+p}")
    A("  s_lshl_b32 s31, s20, 5"); A("  s_add_u32 s31, s31, s21")
    A("  v_lshl_add_u32 v8, v1, 4, s31")
    A("  v_lshlrev_b32 v9, 9, v8"); A("  v_lshl_add_u32 v9, v2, 2, v9")
    A(f"  s_mov_b32 s31, {WS_OP}")
    A("  buffer_store_dword v7, v9, s[16:19], s31 offen")
    A("  v_cmp_eq_u32 vcc, 0, v2"); A("  s_and_saveexec_b64 s[36:37], vcc"); A("  s_cbranch_execz K2_END")
    A("  v_lshlrev_b32 v9, 3, v8"); A("  v_mov_b32 v4, v5"); A("  v_mov_b32 v5, v6")
    A(f"  s_mov_b32 s31, {WS_ST}")
    A("  buffer_store_dwordx2 v[4:5], v9, s[16:19], s31 offen")
    A("K2_END:")
    kernel_end(n,224,48)

def k3():
    n="k3out_kernel"
    kernel_begin(n)
    A("  s_cmp_ge_u32 s2, 272"); A("  s_cbranch_scc1 K3_END")
    A("  s_load_dwordx2 s[4:5], s[0:1], 32")
    A("  s_load_dwordx2 s[6:7], s[0:1], 64")
    A("  s_load_dwordx2 s[12:13], s[0:1], 88")
    A("  s_load_dwordx4 s[40:43], s[0:1], 72")
    A("  s_load_dwordx2 s[44:45], s[0:1], 0")
    A("  s_waitcnt lgkmcnt(0)")
    A("  s_mov_b32 s16, s12"); A("  s_mov_b32 s17, s13"); A(f"  s_mov_b32 s18, {WS_SIZE}"); A("  s_mov_b32 s19, 0x00020000")
    A("  s_cmp_lt_u32 s2, 128")
    A("  s_cselect_b32 s8, s4, s6"); A("  s_cselect_b32 s9, s5, s7")
    A("  s_cselect_b32 s20, 0, 128"); A("  s_sub_u32 s20, s2, s20")
    A("  s_mul_i32 s21, s20, 36864")
    A("  s_add_u32 s8, s8, s21"); A("  s_addc_u32 s9, s9, 0"); A("  s_mov_b32 s10, 36864"); A("  s_mov_b32 s11, 0x00020000")
    A("  v_lshlrev_b32 v3, 4, v0")
    A("  s_mov_b32 s22, 9216"); A("  s_mov_b32 s23, 18432"); A("  s_mov_b32 s24, 27648")
    for i,s in enumerate(["0","s22","s23","s24"]):
        A(f"  buffer_load_dwordx4 v[{40+4*i}:{43+4*i}], v3, s[8:11], {s} offen nt")
    A("  v_cmp_gt_u32 vcc, 32, v0"); A("  s_and_saveexec_b64 s[30:31], vcc"); A("  s_cbranch_execz K3_B")
    A("  s_cmp_lt_u32 s2, 128"); A("  s_cbranch_scc0 K3_H")
    A("  s_lshr_b32 s25, s2, 2"); A("  s_and_b32 s26, s2, 3")
    A("  s_lshl_b32 s27, s25, 7"); A(f"  s_add_u32 s27, s27, {WS_ST}")
    A("  s_add_u32 s28, s12, s27"); A("  s_addc_u32 s29, s13, 0")
    A("  s_load_dwordx16 s[48:63], s[28:29], 0"); A("  s_load_dwordx16 s[64:79], s[28:29], 64")
    A("  s_lshl_b32 s27, s25, 13"); A("  s_lshl_b32 s26, s26, 7"); A("  s_add_u32 s27, s27, s26"); A(f"  s_add_u32 s27, s27, {WS_OP}")
    A("  v_lshlrev_b32 v4, 2, v0")
    A("  s_add_u32 s26, s27, 4096")
    for s in range(16): A(f"  buffer_load_dword v{8+s}, v4, s[16:19], {'s27' if s<8 else 's26'} offen offset:{(s%8)*512}")
    A("  s_waitcnt lgkmcnt(0)")
    A("  v_mov_b32 v5, s48")
    for s in range(1,16): A(f"  v_max_f32 v5, s{48+2*s}, v5")
    for s in range(16):
        A(f"  v_sub_f32 v{24+s}, s{48+2*s}, v5");
    for s in range(16): A(f"  v_exp_f32 v{24+s}, v{24+s}")
    A("  s_nop 0")
    A("  v_mul_f32 v6, s49, v24")
    for s in range(1,16): A(f"  v_fmac_f32 v6, s{49+2*s}, v{24+s}")
    A("  v_rcp_f32 v6, v6")
    A("  s_waitcnt vmcnt(0)")
    A("  v_mul_f32 v7, v8, v24")
    for s in range(1,16): A(f"  v_fmac_f32 v7, v{8+s}, v{24+s}")
    A("  v_mul_f32 v7, v7, v6")
    rbf16(7)
    A("  ds_write_b32 v4, v7")
    A("  s_branch K3_B")
    A("K3_H:")
    A("  v_lshlrev_b32 v4, 2, v0")
    A("  s_lshl_b32 s27, s20, 7"); A("  s_add_u32 s27, s27, 16384")
    A("  buffer_load_dword v8, v4, s[16:19], s27 offen")
    A("  s_add_u32 s27, s27, 18432")
    A("  buffer_load_dword v9, v4, s[16:19], s27 offen")
    A("  s_waitcnt vmcnt(0)")
    A("  v_mul_f32 v7, v8, v9"); rbf16(7)
    A("  v_cmp_lt_f32 vcc, 0, v8"); A("  s_nop 1"); A("  v_cndmask_b32 v7, 0, v7, vcc")
    A("  ds_write_b32 v4, v7")
    A("K3_B:")
    A("  s_mov_b64 exec, -1")
    A("  s_waitcnt lgkmcnt(0)"); A("  s_barrier")
    A(f"  s_mov_b32 s27, {(1<<32)//72+1}"); A("  v_mul_hi_u32 v5, v0, s27"); A("  v_lshlrev_b32 v5, 2, v5")
    for i in range(4): A(f"  ds_read_b32 v{8+i}, v5 offset:{i*32}")
    A("  s_waitcnt lgkmcnt(0)")
    for i in range(4):
        A(f"  s_waitcnt vmcnt({3-i})")
        for k in range(4):
            r=40+4*i+k
            A(f"  v_lshlrev_b32 v6, 16, v{r}"); A(f"  v_and_b32 v7, 0xffff0000, v{r}")
            op="v_mul_f32" if i==0 else "v_fmac_f32"
            A(f"  {op} v{16+2*k}, v6, v{8+i}"); A(f"  {op} v{17+2*k}, v7, v{8+i}")
    A("  v_lshlrev_b32 v6, 5, v0")
    A("  ds_write_b128 v6, v[16:19] offset:256"); A("  ds_write_b128 v6, v[20:23] offset:272")
    A("  s_waitcnt lgkmcnt(0)"); A("  s_barrier")
    A("  v_lshlrev_b32 v6, 2, v0")
    for p in range(8): A(f"  ds_read_b32 v{16+p}, v6 offset:{256+p*2304}")
    A("  s_waitcnt lgkmcnt(0)")
    for p in range(1,8): A(f"  v_add_f32 v16, v16, v{16+p}")
    A("  s_and_b32 s25, s2, 7"); A("  s_cmp_lt_u32 s2, 128"); A("  s_cselect_b32 s26, 0, 8"); A("  s_add_u32 s25, s25, s26")
    A("  s_mul_i32 s25, s25, 2304"); A(f"  s_add_u32 s25, s25, {WS_ACC}")
    A("  buffer_atomic_add_f32 v16, v6, s[16:19], s25 offen sc1")
    A("  s_waitcnt vmcnt(0)"); A("  s_barrier")
    A("  v_cmp_eq_u32 vcc, 0, v0"); A("  s_and_saveexec_b64 s[30:31], vcc"); A("  s_cbranch_execz K3_C")
    A("  s_mov_b32 s32, s42"); A("  s_mov_b32 s33, s43"); A("  s_mov_b32 s34, 256"); A("  s_mov_b32 s35, 0x00020000")
    A("  v_mov_b32 v7, 1"); A("  v_mov_b32 v8, 0")
    A("  buffer_atomic_add v7, v8, s[32:35], 0 offen sc0 sc1")
    A("  s_waitcnt vmcnt(0)")
    A("  ds_write_b32 v8, v7")
    A("K3_C:")
    A("  s_mov_b64 exec, -1")
    A("  s_waitcnt lgkmcnt(0)"); A("  s_barrier")
    A("  v_mov_b32 v8, 0"); A("  ds_read_b32 v7, v8"); A("  s_waitcnt lgkmcnt(0)")
    A("  v_readfirstlane_b32 s27, v7"); A("  s_nop 3")
    A("  s_cmp_eq_u32 s27, 271"); A("  s_cbranch_scc0 K3_END")
    A(f"  s_mov_b32 s25, {WS_ACC}")
    for p in range(16):
        A(f"  buffer_load_dword v{16+p}, v6, s[16:19], s25 offen sc0 sc1")
        A("  s_add_u32 s25, s25, 2304")
    A("  s_mov_b32 s32, s44"); A("  s_mov_b32 s33, s45"); A("  s_mov_b32 s34, 1152"); A("  s_mov_b32 s35, 0x00020000")
    A("  v_lshlrev_b32 v5, 1, v0")
    A("  buffer_load_ushort v8, v5, s[32:35], 0 offen")
    A("  s_waitcnt vmcnt(0)")
    for p in range(1,8): A(f"  v_add_f32 v16, v16, v{16+p}")
    for p in range(9,16): A(f"  v_add_f32 v24, v24, v{16+p}")
    rbf16(16); rbf16(24)
    A("  v_lshlrev_b32 v8, 16, v8")
    A("  v_add_f32 v8, v8, v16"); rbf16(8)
    A("  v_add_f32 v8, v8, v24")
    A("  v_cvt_pk_bf16_f32 v8, v8, v8")
    A("  s_mov_b32 s32, s40"); A("  s_mov_b32 s33, s41")
    A("  buffer_store_short v8, v5, s[32:35], 0 offen")
    A("K3_END:")
    kernel_end(n,64,96)

for l in hdr: A(l)
A("; @launch kernel=k1proj_kernel grid=(208,1,1) block=(256,1,1) lds=17408")
A("; @launch kernel=k2attn_kernel grid=(256,1,1) block=(256,1,1) lds=16640")
A("; @launch kernel=k3out_kernel grid=(272,1,1) block=(576,1,1) lds=18688")
A('.amdgcn_target "amdgcn-amd-amdhsa--gfx950"')
k1(); k2(); k3()
open(sys.argv[1] if len(sys.argv)>1 else 'cdna_kernels/%s.s'%NAME,'w').write('\n'.join(out)+'\n')
```
